```python
import torch

def _softmax(x, axis=-1):
    return torch.softmax(x, dim=axis)
def _gelu(x):
    return torch.nn.functional.gelu(x, approximate="tanh")
def _silu(x):
    return torch.nn.functional.silu(x)
def _sigmoid(x):
    return torch.sigmoid(x)
def _layernorm(x, axis=-1, eps=1e-5):
    m = x.mean(dim=axis, keepdim=True)
    v = x.var(dim=axis, keepdim=True, unbiased=False)
    return (x - m) / torch.sqrt(v + eps)
def _scatter_add(tgt, idx, src, axis=0):
    return tgt.clone().index_add_(axis, idx, src)
def _segment_sum(src, seg, n):
    out = torch.zeros((n,) + src.shape[1:], dtype=src.dtype)
    return out.index_add_(0, seg, src)
def _pad(x, pw):
    flat = tuple(v for pair in reversed(pw) for v in pair)
    return torch.nn.functional.pad(x, flat)

kernel_name = 'concat_heads__mha_block_cached__mha_block_cached__near_ridge'

def setup_inputs():

    _w = (lambda a: (lambda t: t.to(torch.bfloat16) if t.is_floating_point() else t)(torch.as_tensor(a)))
    def _A_setup():
        B, Sq, D = 8, 192, 512
        H, Sk, Dh = 32, 1024, 128
        return {
            "x": _w((lambda *s: torch.randn(*s, dtype=torch.bfloat16) * 0.8)(B, Sq, D)),
            "k_cache": _w((lambda *s: torch.randn(*s, dtype=torch.bfloat16) * 0.8)(B, H, Sk, Dh)),
            "v_cache": _w((lambda *s: torch.randn(*s, dtype=torch.bfloat16) * 0.05)(B, H, Sk, Dh)),
            "wq": _w((lambda *s: torch.randn(*s, dtype=torch.bfloat16) * 0.8)(D, H * Dh) * (D ** -0.5)),
            "wo": _w((lambda *s: torch.randn(*s, dtype=torch.bfloat16) * 0.05)(H * Dh, D) * ((H * Dh) ** -0.5)),
        }
    _A_in = _A_setup()

    def _B_setup():
        B, Sq, D = 8, 192, 512
        H, Sk, Dh = 32, 1024, 128
        return {
            "x": _w((lambda *s: torch.randn(*s, dtype=torch.bfloat16) * 0.8)(B, Sq, D)),
            "k_cache": _w((lambda *s: torch.randn(*s, dtype=torch.bfloat16) * 0.8)(B, H, Sk, Dh)),
            "v_cache": _w((lambda *s: torch.randn(*s, dtype=torch.bfloat16) * 0.05)(B, H, Sk, Dh)),
            "wq": _w((lambda *s: torch.randn(*s, dtype=torch.bfloat16) * 0.8)(D, H * Dh) * (D ** -0.5)),
            "wo": _w((lambda *s: torch.randn(*s, dtype=torch.bfloat16) * 0.05)(H * Dh, D) * ((H * Dh) ** -0.5)),
        }
    _B_in = _B_setup()

    return {
        "A_x": _A_in["x"],
        "A_k_cache": _A_in["k_cache"],
        "A_v_cache": _A_in["v_cache"],
        "A_wq": _A_in["wq"],
        "A_wo": _A_in["wo"],
        "B_x": _B_in["x"],
        "B_k_cache": _B_in["k_cache"],
        "B_v_cache": _B_in["v_cache"],
        "B_wq": _B_in["wq"],
        "B_wo": _B_in["wo"],
    }

def reference(A_x, A_k_cache, A_v_cache, A_wq, A_wo, B_x, B_k_cache, B_v_cache, B_wq, B_wo):
    def _A_ref(x, k_cache, v_cache, wq, wo):
        B, Sq, D = x.shape
        H, Dh = 32, 128
        q = (lambda x, *d: x.permute(*d))((x @ wq).reshape(B, Sq, H, Dh), 0, 2, 1, 3)
        scores = torch.einsum("bhqd,bhkd->bhqk", q, k_cache) * (Dh ** -0.5)
        p = _softmax(scores, axis=-1)
        o = torch.einsum("bhqk,bhkd->bhqd", p, v_cache)
        return (lambda x, *d: x.permute(*d))(o, 0, 2, 1, 3).reshape(B, Sq, H * Dh) @ wo

    def _B_ref(x, k_cache, v_cache, wq, wo):
        B, Sq, D = x.shape
        H, Dh = 32, 128
        q = (lambda x, *d: x.permute(*d))((x @ wq).reshape(B, Sq, H, Dh), 0, 2, 1, 3)
        scores = torch.einsum("bhqd,bhkd->bhqk", q, k_cache) * (Dh ** -0.5)
        p = _softmax(scores, axis=-1)
        o = torch.einsum("bhqk,bhkd->bhqd", p, v_cache)
        return (lambda x, *d: x.permute(*d))(o, 0, 2, 1, 3).reshape(B, Sq, H * Dh) @ wo

    a = _A_ref(A_x, A_k_cache, A_v_cache, A_wq, A_wo)
    b = _B_ref(B_x, B_k_cache, B_v_cache, B_wq, B_wo)
    return torch.concatenate([a, b], axis=-1)
```

```python
class Ins:
    __slots__ = ('text', 'kind', 'wr', 'rd', 'rdC', 'nop', 'wrs', 'rds')
    def __init__(self, text, kind, wr=(), rd=(), rdC=(), nop=0, wrs=(), rds=()):
        self.text = text; self.kind = kind
        self.wr = tuple(wr); self.rd = tuple(rd); self.rdC = tuple(rdC)
        self.nop = nop; self.wrs = tuple(wrs); self.rds = tuple(rds)

def R(b, n):
    return list(range(b, b + n))

def vr(b, n=1):
    return f"v{b}" if n == 1 else f"v[{b}:{b+n-1}]"

def sr(b, n=1):
    return f"s{b}" if n == 1 else f"s[{b}:{b+n-1}]"

class Asm:
    def __init__(self):
        self.ins = []
        self.vq = []
        self.lq = []
    def raw(self, text, kind='other', **kw):
        self.ins.append(Ins(text, kind, **kw))
    def label(self, name):
        self.ins.append(Ins(name + ':', 'label'))
    def comment(self, t):
        self.ins.append(Ins('; ' + t, 'comment'))
    def salu(self, text, wrs=(), rds=()):
        self.raw(text, 'salu', wrs=wrs, rds=rds)
    def nop(self, n):
        self.raw(f"s_nop {n}", 'nop', nop=n)
    def valu(self, text, wr=(), rd=(), trans=False, wrs=(), rds=()):
        self.raw(text, 'trans' if trans else 'valu', wr=wr, rd=rd, wrs=wrs, rds=rds)
    def mfma(self, D, A, B, C=None):
        c = '0' if C is None else vr(C, 4)
        self.raw(f"v_mfma_f32_16x16x32_bf16 {vr(D,4)}, {vr(A,4)}, {vr(B,4)}, {c}", 'mfma',
                 wr=R(D, 4), rd=R(A, 4) + R(B, 4), rdC=(R(C, 4) if C is not None else ()))
    def ds(self, text, tag, wr=(), rd=()):
        self.raw(text, 'ds', wr=wr, rd=rd)
        self.lq.append(tag)
    def vmem(self, text, tag, wr=(), rd=(), rds=(), m0=False):
        self.raw(text, 'vmem_m0' if m0 else 'vmem', wr=wr, rd=rd, rds=rds)
        self.vq.append(tag)
    def _cnt(self, q, tag):
        idx = -1
        for i, t in enumerate(q):
            if t == tag: idx = i
        if idx < 0: return None
        return len(q) - 1 - idx
    def wait(self, vm=None, lg=None, lg0=False, vm0=False):
        parts = []
        if vm0:
            parts.append("vmcnt(0)"); self.vq = []
        elif vm is not None:
            n = self._cnt(self.vq, vm)
            if n is not None:
                assert n <= 63, n
                parts.append(f"vmcnt({n})"); self.vq = self.vq[len(self.vq) - n:] if n else []
        if lg0:
            parts.append("lgkmcnt(0)"); self.lq = []
        elif lg is not None:
            n = self._cnt(self.lq, lg)
            if n is not None:
                if n > 15: n = 15
                parts.append(f"lgkmcnt({n})"); self.lq = self.lq[len(self.lq) - n:] if n else []
        if parts:
            self.raw("s_waitcnt " + " ".join(parts), 'wait')
    def finalize(self, carry=None):
        out = []
        t = 0
        lw = {}
        lc = {}
        lst = {}
        lsw = {}
        nins = 0
        for I in self.ins:
            k = I.kind
            if k in ('label', 'comment'):
                out.append(I.text if k == 'label' else '    ' + I.text); continue
            need = 0
            def req(t0, n):
                nonlocal need
                need = max(need, n - (t - t0 - 1))
            if k == 'mfma':
                for r in I.rd:
                    if r in lw:
                        t0, kk, D = lw[r]
                        if kk in ('valu', 'trans'): req(t0, 2)
                        elif kk == 'mfma': req(t0, 8)
                for r in I.rdC:
                    if r in lw:
                        t0, kk, D = lw[r]
                        if kk in ('valu', 'trans'): req(t0, 2)
                        elif kk == 'mfma':
                            if tuple(D) != tuple(I.rdC): req(t0, 6)
                for r in I.wr:
                    if r in lw:
                        t0, kk, D = lw[r]
                        if kk == 'mfma' and tuple(D) != tuple(I.wr): req(t0, 8)
                        if kk == 'mfma' and tuple(D) == tuple(I.wr) and tuple(I.rdC) != tuple(I.wr): req(t0, 8)
            elif k in ('valu', 'trans'):
                for r in list(I.rd) + list(I.wr):
                    if r in lw:
                        t0, kk, D = lw[r]
                        if kk == 'mfma': req(t0, 8)
                for r in I.rd:
                    if r in lw:
                        t0, kk, D = lw[r]
                        if kk == 'trans' and k != 'trans': req(t0, 1)
                for r in I.wr:
                    if r in lc: req(lc[r], 3)
                    if r in lst: req(lst[r], 2)
                for s in I.rds:
                    if s in lsw and lsw[s][1] == 'valu': req(lsw[s][0], 2)
                if 'readfirstlane' in I.text or 'readlane' in I.text or 'permlane' in I.text:
                    for r in list(I.rd) + (list(I.wr) if 'permlane' in I.text else []):
                        if r in lw and lw[r][1] in ('valu', 'trans'): req(lw[r][0], 2)
            elif k in ('ds', 'vmem', 'vmem_m0'):
                for r in list(I.rd) + list(I.wr):
                    if r in lw:
                        t0, kk, D = lw[r]
                        if kk == 'mfma': req(t0, 8)
                for s in I.rds:
                    if s in lsw and lsw[s][1] == 'valu': req(lsw[s][0], 5)
                if k == 'vmem_m0' and 'm0' in lsw: req(lsw['m0'][0], 1)
            elif k == 'salu':
                for s in I.rds:
                    if s in lsw and lsw[s][1] == 'valu': req(lsw[s][0], 4)
            while need > 0:
                n = min(need, 16)
                out.append(f"    s_nop {n-1}")
                t += n; need -= n
            out.append('    ' + I.text)
            nins += 1
            if k == 'nop':
                t += I.nop + 1
                continue
            for r in I.wr:
                lw[r] = (t, 'valu' if k == 'valu' else k, I.wr)
            if k == 'mfma':
                for r in I.rdC: lc[r] = t
            if k == 'vmem' and 'store' in I.text:
                for r in I.rd: lst[r] = t
            for s in I.wrs:
                lsw[s] = (t, 'valu' if k in ('valu', 'trans') else 'salu')
            t += 1
        self.nins = nins
        return out
```

```python
import struct, sys, math
from asmlib import *

NAME = "concat_heads__mha_block_cached__mha_block_cached__near_ridge"
K1 = "attn_fused_kernel"
K2 = "oproj_kernel"

def f2u(x): return struct.unpack('<I', struct.pack('<f', x))[0]

HALF = 8448
SLOT = 2 * HALF
BLK = 1056
CSCALE = (128 ** -0.5) * math.log2(math.e)
THR = 8.0

vKa, vVa, vWa, vDKV, vDW, vX, vL16 = 1, 2, 3, 4, 5, 6, 7
FB = 8
NEGM = 28
LS = 40
FS = 46
TMAX = 49
SX, SY = 56, 80
QP = 104
OA = 152
T0 = 248
BP16, BP32 = 252, 253
XB = 56

sW = 3
SRD_K, SRD_V, SRD_W, SRD_X, SRD_O = 8, 12, 16, 20, 24
sKoff, sVoff, sTmp, sTmp2, sX1, sX2, sM0b, sLoop, sFlag, sOst = 28, 29, 30, 31, 32, 33, 34, 35, 36, 37
sC = 38

def build_srd(a, srd, lo, hi, nrec):
    a.salu(f"s_mov_b32 s{srd}, s{lo}")
    a.salu(f"s_and_b32 s{srd+1}, s{hi}, 0xffff")
    a.salu(f"s_mov_b32 s{srd+2}, {nrec}") if isinstance(nrec, int) else a.salu(f"s_mov_b32 s{srd+2}, {nrec}")
    a.salu(f"s_mov_b32 s{srd+3}, 0x00020000")

def gen_k1():
    a = Asm()
    A = a
    a.label(K1)
    a.salu("s_cmp_ge_u32 s2, 512")
    a.raw("s_cbranch_scc1 K1_done", 'branch')
    a.salu("s_and_b32 s4, s2, 7")
    a.salu("s_lshr_b32 s5, s2, 3")
    a.salu("s_lshr_b32 s6, s4, 2")
    a.salu("s_and_b32 s4, s4, 3")
    a.salu("s_lshl_b32 s4, s4, 3")
    a.salu("s_and_b32 s7, s5, 7")
    a.salu("s_add_u32 s4, s4, s7")
    a.salu("s_lshr_b32 s5, s5, 3")
    a.salu("s_mul_i32 s7, s6, 40")
    a.raw("s_load_dwordx8 s[44:51], s[0:1], s7", 'smem')
    a.raw("s_load_dwordx2 s[52:53], s[0:1], 96", 'smem')
    a.valu("v_lshrrev_b32 v8, 6, v0", wr=[8], rd=[0])
    a.valu("v_and_b32 v9, 63, v0", wr=[9], rd=[0])
    a.valu(f"v_readfirstlane_b32 s{sW}, v8", rd=[8], wrs=[sW])
    a.valu("v_and_b32 v10, 15, v9", wr=[10], rd=[9])
    a.valu("v_lshrrev_b32 v11, 4, v9", wr=[11], rd=[9])
    a.valu("v_and_b32 v12, 3, v9", wr=[12], rd=[9])
    a.valu("v_bfe_u32 v13, v9, 2, 2", wr=[13], rd=[9])
    a.salu(f"s_mov_b32 s40, {BLK}")
    a.valu("v_and_b32 v14, 7, v10", wr=[14], rd=[10])
    a.valu(f"v_mul_lo_u32 v{vKa}, v14, s40", wr=[vKa], rd=[14])
    a.valu("v_lshrrev_b32 v14, 3, v10", wr=[14], rd=[10])
    a.valu(f"v_lshl_add_u32 v{vKa}, v14, 8, v{vKa}", wr=[vKa], rd=[14, vKa])
    a.valu(f"v_lshl_add_u32 v{vKa}, v11, 4, v{vKa}", wr=[vKa], rd=[11, vKa])
    a.valu("v_and_b32 v14, 1, v11", wr=[14], rd=[11])
    a.valu("v_lshl_add_u32 v14, v14, 2, v13", wr=[14], rd=[14, 13])
    a.valu("v_mul_lo_u32 v14, v14, s40", wr=[14], rd=[14])
    a.valu("v_lshrrev_b32 v15, 1, v11", wr=[15], rd=[11])
    a.valu(f"v_lshl_add_u32 v{vVa}, v15, 8, v14", wr=[vVa], rd=[15, 14])
    a.valu(f"v_lshl_add_u32 v{vVa}, v12, 3, v{vVa}", wr=[vVa], rd=[12, vVa])
    a.valu(f"v_lshl_add_u32 v{vWa}, v15, 9, v14", wr=[vWa], rd=[15, 14])
    a.valu(f"v_lshl_add_u32 v{vWa}, v12, 4, v{vWa}", wr=[vWa], rd=[12, vWa])
    a.valu(f"v_lshlrev_b32 v{vDKV}, 11, v11", wr=[vDKV], rd=[11])
    a.valu(f"v_lshl_add_u32 v{vDKV}, v10, 4, v{vDKV}", wr=[vDKV], rd=[10, vDKV])
    a.valu(f"v_lshl_add_u32 v{vDKV}, v8, 9, v{vDKV}", wr=[vDKV], rd=[8, vDKV])
    a.valu("v_lshlrev_b32 v14, 4, v15", wr=[14], rd=[15])
    a.valu("v_lshrrev_b32 v16, 1, v8", wr=[16], rd=[8])
    a.valu("v_lshl_add_u32 v14, v16, 3, v14", wr=[14], rd=[16, 14])
    a.valu("v_and_b32 v16, 1, v11", wr=[16], rd=[11])
    a.valu("v_lshl_add_u32 v14, v16, 2, v14", wr=[14], rd=[16, 14])
    a.valu("v_and_b32 v16, 1, v8", wr=[16], rd=[8])
    a.valu("v_lshl_add_u32 v14, v16, 1, v14", wr=[14], rd=[16, 14])
    a.valu(f"v_lshlrev_b32 v{vDW}, 13, v14", wr=[vDW], rd=[14])
    a.valu(f"v_lshl_add_u32 v{vDW}, v10, 4, v{vDW}", wr=[vDW], rd=[10, vDW])
    a.valu("v_mul_u32_u24 v14, 48, v8", wr=[14], rd=[8])
    a.valu("v_add_u32 v14, v14, v10", wr=[14], rd=[14, 10])
    a.valu(f"v_lshlrev_b32 v{vX}, 10, v14", wr=[vX], rd=[14])
    a.valu(f"v_lshl_add_u32 v{vX}, v11, 4, v{vX}", wr=[vX], rd=[11, vX])
    a.valu(f"v_lshlrev_b32 v{vL16}, 4, v9", wr=[vL16], rd=[9])
    a.valu("v_xor_b32 v14, 16, v9", wr=[14], rd=[9])
    a.valu(f"v_lshlrev_b32 v{BP16}, 2, v14", wr=[BP16], rd=[14])
    a.valu("v_xor_b32 v14, 32, v9", wr=[14], rd=[9])
    a.valu(f"v_lshlrev_b32 v{BP32}, 2, v14", wr=[BP32], rd=[14])
    a.salu(f"s_mul_i32 s{sM0b}, s{sW}, {2*BLK}")
    a.salu(f"s_mov_b32 s{sX1}, 16384")
    a.salu(f"s_mov_b32 s{sX2}, 32768")
    a.salu(f"s_mov_b32 s{sFlag}, 0")
    a.salu(f"s_mov_b32 s{sC}, {hex(f2u(CSCALE))}")
    a.salu(f"s_mov_b32 s{sC+1}, {hex(f2u(CSCALE))}")
    a.salu("s_mul_i32 s41, s6, 96")
    a.salu("s_mul_i32 s42, s5, 12")
    a.salu("s_add_u32 s41, s41, s42")
    a.salu(f"s_mul_i32 s42, s{sW}, 3")
    a.salu("s_add_u32 s41, s41, s42")
    a.salu("s_lshl_b32 s41, s41, 7")
    a.salu("s_lshl_b32 s42, s4, 2")
    a.salu("s_add_u32 s41, s41, s42")
    a.salu(f"s_lshl_b32 s{sOst}, s41, 10")
    a.raw("s_waitcnt lgkmcnt(0)", 'wait')
    a.salu("s_lshl_b32 s41, s5, 5")
    a.salu("s_add_u32 s41, s41, s4")
    a.salu("s_lshl_b32 s41, s41, 18")
    a.salu("s_add_u32 s46, s46, s41"); a.salu("s_addc_u32 s47, s47, 0")
    a.salu("s_add_u32 s48, s48, s41"); a.salu("s_addc_u32 s49, s49, 0")
    a.salu("s_lshl_b32 s42, s4, 8")
    a.salu("s_add_u32 s50, s50, s42"); a.salu("s_addc_u32 s51, s51, 0")
    a.salu("s_sub_u32 s43, 0x400000, s42")
    a.salu("s_mul_i32 s42, s5, 196608")
    a.salu("s_add_u32 s44, s44, s42"); a.salu("s_addc_u32 s45, s45, 0")
    build_srd(a, SRD_K, 46, 47, 262144)
    build_srd(a, SRD_V, 48, 49, 262144)
    build_srd(a, SRD_W, 50, 51, "s43")
    build_srd(a, SRD_X, 44, 45, 196608)
    build_srd(a, SRD_O, 52, 53, 25165824)

    def dma_w(tau):
        slot = (tau & 3) * SLOT
        for hh in range(2):
            for e in range(2):
                a.salu(f"s_add_u32 m0, s{sM0b}, {slot + hh*HALF + e*BLK}", wrs=['m0'])
                a.salu(f"s_mov_b32 s{sTmp}, {tau*524288 + hh*262144 + e*8192}")
                a.vmem(f"buffer_load_dwordx4 v{vDW}, s[{SRD_W}:{SRD_W+3}], s{sTmp} offen lds", ('T', tau), rd=[vDW], m0=True)
    def dma_half(tau, hh, srd, soff):
        slot = (tau & 3) * SLOT
        for e in range(2):
            a.salu(f"s_add_u32 m0, s{sM0b}, {slot + hh*HALF + e*BLK - e*256}", wrs=['m0'])
            if isinstance(soff, int):
                a.salu(f"s_mov_b32 s{sTmp}, {soff}")
                so = f"s{sTmp}"
            else:
                so = soff
            a.vmem(f"buffer_load_dwordx4 v{vDKV}, s[{srd}:{srd+3}], {so} offen offset:{e*256} lds", ('T', tau), rd=[vDKV], m0=True)
    def dma_tile(tau, dyn=False):
        if tau < 8:
            dma_w(tau)
        else:
            i = tau - 8
            if dyn:
                dma_half(tau, 0, SRD_V, f"s{sVoff}")
                dma_half(tau, 1, SRD_K, f"s{sKoff}")
                a.salu(f"s_add_u32 s{sVoff}, s{sVoff}, 8192")
                a.salu(f"s_add_u32 s{sKoff}, s{sKoff}, 8192")
            else:
                if i == 0: dma_half(tau, 0, SRD_K, 0)
                else: dma_half(tau, 0, SRD_V, (i - 1) * 8192)
                dma_half(tau, 1, SRD_K, (i + 1) * 8192)
    def x_loads(tau):
        xb = XB + (tau & 3) * 24
        for qt in range(3):
            for cc in range(2):
                d = xb + (qt * 2 + cc) * 4
                so = ["0", f"s{sX1}", f"s{sX2}"][qt]
                a.vmem(f"buffer_load_dwordx4 {vr(d,4)}, v{vX}, s[{SRD_X}:{SRD_X+3}], {so} offen offset:{tau*128+cc*64}", ('T', tau), wr=R(d, 4), rd=[vX])

    def frag_list(tau):
        if tau < 8:
            return [('W', cc, ut) for cc in range(2) for ut in range(8)]
        i = tau - 8
        L = []
        if i == 0: L += [('K', 0, kt, u) for kt in range(2) for u in range(4)]
        else: L += [('V', dt) for dt in range(8)]
        if i <= 30: L += [('K', 1, kt, u) for kt in range(2) for u in range(4)]
        return L
    def read_frag(tau, n, fr):
        slot = (tau & 3) * SLOT
        b = FB + (n & 3) * 4
        tag = ('F', tau, n)
        if fr[0] == 'W':
            _, cc, ut = fr; u, t = ut >> 1, ut & 1
            for half in range(2):
                a.ds(f"ds_read_b64_tr_b16 {vr(b+2*half,2)}, v{vWa} offset:{slot + cc*HALF + half*256 + 64*u + 8*t}", tag, wr=R(b+2*half, 2), rd=[vWa])
        elif fr[0] == 'V':
            dt = fr[1]
            for half in range(2):
                a.ds(f"ds_read_b64_tr_b16 {vr(b+2*half,2)}, v{vVa} offset:{slot + dt*32 + half*512}", tag, wr=R(b+2*half, 2), rd=[vVa])
        else:
            _, hh, kt, u = fr
            a.ds(f"ds_read_b128 {vr(b,4)}, v{vKa} offset:{slot + hh*HALF + kt*512 + u*64}", tag, wr=R(b, 4), rd=[vKa])

    def mfmas_for(tau, n, fr, Sc, Sn):
        b = FB + (n & 3) * 4
        res = []
        for qt in range(3):
            if fr[0] == 'W':
                _, cc, ut = fr
                D = OA + (qt * 8 + ut) * 4
                B = XB + (tau & 3) * 24 + (qt * 2 + cc) * 4
                C = None if (tau == 0 and cc == 0) else D
                res.append((D, b, B, C))
            elif fr[0] == 'V':
                dt = fr[1]
                D = OA + (qt * 8 + dt) * 4
                res.append((D, b, Sn + qt * 8, D))
            else:
                _, hh, kt, u = fr
                if hh == 0:
                    D = Sc + qt * 8 + kt * 4
                    C = None if u == 0 else D
                else:
                    D = Sn + qt * 8 + kt * 4
                    C = NEGM + qt * 4 if u == 0 else D
                res.append((D, b, QP + (qt * 4 + u) * 4, C))
        return res

    def op_max_chain(S, kt, first):
        vals = [S + qt * 8 + kt * 4 + r for qt in range(3) for r in range(4)]
        ops = []
        if first:
            x, y, z = vals[:3]; vals = vals[3:]
            ops.append((4, lambda x=x, y=y, z=z: a.valu(f"v_max3_f32 v{TMAX}, v{x}, v{y}, v{z}", wr=[TMAX], rd=[x, y, z])))
        while len(vals) >= 2:
            x, y = vals[:2]; vals = vals[2:]
            ops.append((4, lambda x=x, y=y: a.valu(f"v_max3_f32 v{TMAX}, v{TMAX}, v{x}, v{y}", wr=[TMAX], rd=[TMAX, x, y])))
        if vals:
            x = vals[0]
            ops.append((4, lambda x=x: a.valu(f"v_max_f32 v{TMAX}, v{TMAX}, v{x}", wr=[TMAX], rd=[TMAX, x])))
        return ops
    def op_softmax(S):
        ops = []
        for qt in range(3):
            bq = S + qt * 8
            l = LS + qt * 2
            for p in range(4):
                e0, e1 = bq + 2 * p, bq + 2 * p + 1
                ops.append((8, lambda e=e0: a.valu(f"v_exp_f32 v{e}, v{e}", wr=[e], rd=[e], trans=True)))
                ops.append((8, lambda e=e1: a.valu(f"v_exp_f32 v{e}, v{e}", wr=[e], rd=[e], trans=True)))
                if p >= 1:
                    ops.append(mk_add_cvt(bq, p - 1, l))
            ops.append(mk_add_cvt(bq, 3, l))
        flat = []
        for o in ops:
            if isinstance(o, list): flat += o
            else: flat.append(o)
        return flat
    def mk_add_cvt(bq, p, l):
        e0 = bq + 2 * p
        return [
            (4, lambda: a.valu(f"v_pk_add_f32 {vr(l,2)}, {vr(l,2)}, {vr(e0,2)}", wr=R(l, 2), rd=R(l, 2) + R(e0, 2))),
            (4, lambda: a.valu(f"v_cvt_pk_bf16_f32 v{bq+p}, v{e0}, v{e0+1}", wr=[bq + p], rd=[e0, e0 + 1])),
        ]

    rare1 = []
    rare2 = []
    def rescale_code(S, init):
        a.nop(7); a.nop(7)
        for qt in range(3):
            bq = S + qt * 8
            t, t2 = T0, T0 + 1
            a.valu(f"v_max3_f32 v{t}, v{bq}, v{bq+1}, v{bq+2}", wr=[t], rd=[bq, bq+1, bq+2])
            a.valu(f"v_max3_f32 v{t}, v{t}, v{bq+3}, v{bq+4}", wr=[t], rd=[t, bq+3, bq+4])
            a.valu(f"v_max3_f32 v{t}, v{t}, v{bq+5}, v{bq+6}", wr=[t], rd=[t, bq+5, bq+6])
            a.valu(f"v_max_f32 v{t}, v{t}, v{bq+7}", wr=[t], rd=[t, bq+7])
            for bp in (BP16, BP32):
                a.ds(f"ds_bpermute_b32 v{t2}, v{bp}, v{t}", ('B',), wr=[t2], rd=[bp, t])
                a.wait(lg0=True)
                a.valu(f"v_max_f32 v{t}, v{t}, v{t2}", wr=[t], rd=[t, t2])
            if not init:
                a.valu(f"v_max_f32 v{t}, 0, v{t}", wr=[t], rd=[t])
            for k in range(8):
                a.valu(f"v_sub_f32 v{bq+k}, v{bq+k}, v{t}", wr=[bq+k], rd=[bq+k, t])
            for k in range(4):
                if init:
                    a.valu(f"v_sub_f32 v{NEGM+qt*4+k}, 0, v{t}", wr=[NEGM+qt*4+k], rd=[t])
                else:
                    a.valu(f"v_sub_f32 v{NEGM+qt*4+k}, v{NEGM+qt*4+k}, v{t}", wr=[NEGM+qt*4+k], rd=[NEGM+qt*4+k, t])
            if not init:
                a.valu(f"v_exp_f32 v{FS+qt}, -v{t}", wr=[FS+qt], rd=[t], trans=True)
                a.nop(0)
                for k in range(2):
                    a.valu(f"v_mul_f32 v{LS+qt*2+k}, v{LS+qt*2+k}, v{FS+qt}", wr=[LS+qt*2+k], rd=[LS+qt*2+k, FS+qt])
        if not init:
            a.salu(f"s_mov_b32 s{sFlag}, 1")
        a.nop(3)

    ctr = [0]
    def step(tau, Sc, Sn, dyn=False, last=False):
        L = frag_list(tau)
        n = len(L)
        i = tau - 8
        Ln = frag_list(tau + 1) if not last else []
        ngap = n * 3
        gaps = [[] for _ in range(ngap)]
        hooks = {}
        if tau >= 8:
            pre = []
            if i >= 1 and i <= 31:
                c_ops = op_max_chain(Sc, 0, True)
                a_ops = op_max_chain(Sc, 1, False)
                for k, o in enumerate(c_ops): gaps[k // 2].append(o)
                for k, o in enumerate(a_ops): gaps[3 + k // 2].append(o)
                start = 6
                lab = f"K1_r1_{ctr[0]}"; back = f"K1_b1_{ctr[0]}"; ctr[0] += 1
                def chk(lab=lab, back=back):
                    a.valu(f"v_cmp_lt_f32 vcc, {hex(f2u(THR))}, v{TMAX}", rd=[TMAX], wrs=['vcc'])
                    a.raw(f"s_cbranch_vccnz {lab}", 'branch')
                    a.label(back)
                hooks[6] = chk
                rare1.append((lab, back, Sc))
                lab2 = f"K1_r2_{ctr[0]}"; back2 = f"K1_b2_{ctr[0]}"; ctr[0] += 1
                def chk2(lab2=lab2, back2=back2):
                    a.salu(f"s_cmp_lg_u32 s{sFlag}, 0")
                    a.raw(f"s_cbranch_scc1 {lab2}", 'branch')
                    a.label(back2)
                h2 = 30 if n == 16 else None
                if h2 is not None:
                    hooks[h2] = chk2
                else:
                    hooks['end'] = chk2
                rare2.append((lab2, back2))
                sm = op_softmax(Sc)
            elif i == 0:
                start = 24
                hooks[24] = lambda: rescale_code(Sc, True)
                sm = op_softmax(Sc)
            else:
                sm = []; start = 0
            if sm:
                tot = sum(c for c, _ in sm)
                avail = ngap - start
                per = tot / avail
                gi = start; acc = 0.0
                for c, o in sm:
                    gaps[min(gi, ngap - 1)].append((c, o))
                    acc += c
                    while acc >= per * (gi - start + 1) - 1e-9 and gi < ngap - 1: gi += 1
        for g in range(n):
            if tau < 4 and g == 0 and tau >= 1:
                pass
            if 1 <= tau <= 4 and g == 0:
                x_loads(tau + 3)
            if g + 3 < n:
                read_frag(tau, g + 3, L[g + 3])
            if g == n - 2 and not last:
                a.wait(vm=('T', tau + 1), lg0=True)
                a.raw("s_barrier", 'barrier')
                dma_tile(tau + 4, dyn=dyn)
                read_frag(tau + 1, 0, Ln[0])
                read_frag(tau + 1, 1, Ln[1])
            if g == n - 1 and not last:
                read_frag(tau + 1, 2, Ln[2])
            a.wait(lg=('F', tau, g))
            ms = mfmas_for(tau, g, L[g], Sc, Sn)
            for k in range(3):
                gi = g * 3 + k
                if gi in hooks: hooks[gi]()
                a.mfma(*ms[k])
                for c, o in gaps[gi]: o()
        if 'end' in hooks:
            hooks['end']()

    for t in range(4):
        dma_tile(t); x_loads(t)
    a.wait(vm=('T', 0))
    a.raw("s_barrier", 'barrier')
    L0 = frag_list(0)
    for n in range(3): read_frag(0, n, L0[n])
    for tau in range(8):
        step(tau, SX, SY)
    for qt in range(3):
        for u in range(4):
            for t in range(2):
                src = OA + (qt * 8 + 2 * u + t) * 4
                for p in range(2):
                    a.valu(f"v_pk_mul_f32 {vr(src+2*p,2)}, {vr(src+2*p,2)}, s[{sC}:{sC+1}]", wr=R(src+2*p, 2), rd=R(src+2*p, 2))
                for p in range(2):
                    d = QP + (qt * 4 + u) * 4 + 2 * t + p
                    a.valu(f"v_cvt_pk_bf16_f32 v{d}, v{src+2*p}, v{src+2*p+1}", wr=[d], rd=[src+2*p, src+2*p+1])
    for k in range(96):
        a.valu(f"v_mov_b32 v{OA+k}, 0", wr=[OA+k])
    for k in range(6):
        a.valu(f"v_mov_b32 v{LS+k}, 0", wr=[LS+k])
    a.salu(f"s_mov_b32 s{sVoff}, {3*8192}")
    a.salu(f"s_mov_b32 s{sKoff}, {5*8192}")
    step(8, SX, SY, dyn=True)
    a.salu(f"s_mov_b32 s{sLoop}, 7")
    vq0 = [(t[0], t[1] - 9) for t in a.vq]; lq0 = [(t[0], t[1] - 9, t[2]) for t in a.lq]
    a.label("K1_loop")
    bufs = [SX, SY]
    for k in range(4):
        i = 1 + k
        step(8 + i, bufs[i & 1], bufs[(i + 1) & 1], dyn=True)
    vq1 = [(t[0], t[1] - 13) for t in a.vq]; lq1 = [(t[0], t[1] - 13, t[2]) for t in a.lq]
    assert vq0 == vq1, (vq0, vq1)
    assert lq0 == lq1, (lq0, lq1)
    a.salu(f"s_sub_u32 s{sLoop}, s{sLoop}, 1")
    a.salu(f"s_cmp_lg_u32 s{sLoop}, 0")
    a.raw("s_cbranch_scc1 K1_loop", 'branch')
    a.vq = [(t[0], t[1] + 24) for t in a.vq]; a.lq = [(t[0], t[1] + 24, t[2]) for t in a.lq]
    for i in range(29, 33):
        step(8 + i, bufs[i & 1], bufs[(i + 1) & 1], dyn=True, last=(i == 32))
    a.nop(7); a.nop(7)
    for qt in range(3):
        l = LS + qt * 2
        t, t2 = T0, T0 + 1
        a.valu(f"v_add_f32 v{t}, v{l}, v{l+1}", wr=[t], rd=[l, l+1])
        for bp in (BP16, BP32):
            a.ds(f"ds_bpermute_b32 v{t2}, v{bp}, v{t}", ('B',), wr=[t2], rd=[bp, t])
            a.wait(lg0=True)
            a.valu(f"v_add_f32 v{t}, v{t}, v{t2}", wr=[t], rd=[t, t2])
        a.valu(f"v_rcp_f32 v{FS+qt}, v{t}", wr=[FS+qt], rd=[t], trans=True)
    a.nop(1)
    for qt in range(3):
        a.salu(f"s_add_u32 s{sTmp}, s{sOst}, {qt*128*1024}")
        for aa in range(4):
            o = OA + (qt * 8 + 2 * aa) * 4
            d = SX + ((qt * 4 + aa) & 3) * 4
            for k in range(8):
                a.valu(f"v_mul_f32 v{o+k}, v{o+k}, v{FS+qt}", wr=[o+k], rd=[o+k, FS+qt])
            for p in range(4):
                a.valu(f"v_cvt_pk_bf16_f32 v{d+p}, v{o+2*p}, v{o+2*p+1}", wr=[d+p], rd=[o+2*p, o+2*p+1])
            a.vmem(f"buffer_store_dwordx4 {vr(d,4)}, v{vL16}, s[{SRD_O}:{SRD_O+3}], s{sTmp} offen offset:{aa*1024}", ('S',), rd=R(d, 4) + [vL16])
    a.label("K1_done")
    a.raw("s_endpgm", 'end')
    for lab, back, S in rare1:
        a.label(lab)
        rescale_code(S, False)
        a.raw(f"s_branch {back}", 'branch')
    for lab, back in rare2:
        a.label(lab)
        a.nop(7); a.nop(7)
        for qt in range(3):
            for k in range(32):
                r = OA + qt * 32 + k
                a.valu(f"v_mul_f32 v{r}, v{r}, v{FS+qt}", wr=[r], rd=[r, FS+qt])
        a.salu(f"s_mov_b32 s{sFlag}, 0")
        a.nop(3)
        a.raw(f"s_branch {back}", 'branch')
    return a

def gen_k2():
    a = Asm()
    vWa, vDW, vL16 = 1, 2, 3
    FB = 8
    ACC = 24
    XB = 72
    RED = 24
    sW, sM0b, sTmp = 3, 34, 30
    SRD_X, SRD_W, SRD_OUT = 8, 12, 16
    sXo = [28, 29, 31]
    sWo = 32
    a.label(K2)
    a.salu("s_cmp_ge_u32 s2, 256")
    a.raw("s_cbranch_scc1 K2_done", 'branch')
    a.salu("s_and_b32 s4, s2, 7")
    a.salu("s_lshr_b32 s5, s2, 3")
    a.salu("s_lshr_b32 s6, s4, 2")
    a.salu("s_and_b32 s4, s4, 3")
    a.salu("s_lshl_b32 s4, s4, 2")
    a.salu("s_lshr_b32 s7, s5, 3")
    a.salu("s_add_u32 s4, s4, s7")
    a.salu("s_and_b32 s5, s5, 7")
    a.salu("s_mul_i32 s7, s6, 40")
    a.salu("s_add_u32 s7, s7, 32")
    a.raw("s_load_dwordx2 s[44:45], s[0:1], s7", 'smem')
    a.raw("s_load_dwordx2 s[46:47], s[0:1], 80", 'smem')
    a.raw("s_load_dwordx2 s[48:49], s[0:1], 96", 'smem')
    a.valu("v_lshrrev_b32 v8, 6, v0", wr=[8], rd=[0])
    a.valu("v_and_b32 v9, 63, v0", wr=[9], rd=[0])
    a.valu(f"v_readfirstlane_b32 s{sW}, v8", rd=[8], wrs=[sW])
    a.valu("v_and_b32 v10, 15, v9", wr=[10], rd=[9])
    a.valu("v_lshrrev_b32 v11, 4, v9", wr=[11], rd=[9])
    a.valu("v_and_b32 v12, 3, v9", wr=[12], rd=[9])
    a.valu("v_bfe_u32 v13, v9, 2, 2", wr=[13], rd=[9])
    a.salu(f"s_mov_b32 s40, {BLK}")
    a.salu(f"s_and_b32 s41, s{sW}, 1")
    a.salu(f"s_lshr_b32 s42, s{sW}, 1")
    a.valu("v_and_b32 v14, 1, v11", wr=[14], rd=[11])
    a.valu("v_lshl_add_u32 v14, v14, 2, v13", wr=[14], rd=[14, 13])
    a.valu("v_mul_lo_u32 v14, v14, s40", wr=[14], rd=[14])
    a.valu("v_lshrrev_b32 v15, 1, v11", wr=[15], rd=[11])
    a.valu(f"v_lshl_add_u32 v{vWa}, v15, 7, v14", wr=[vWa], rd=[15, 14])
    a.valu(f"v_lshl_add_u32 v{vWa}, v12, 3, v{vWa}", wr=[vWa], rd=[12, vWa])
    a.salu(f"s_mul_i32 s43, s42, {4*HALF}")
    a.valu(f"v_add_u32 v{vWa}, s43, v{vWa}", wr=[vWa], rd=[vWa])
    a.valu("v_lshrrev_b32 v14, 3, v9", wr=[14], rd=[9])
    a.valu(f"v_lshlrev_b32 v{vDW}, 13, v14", wr=[vDW], rd=[14])
    a.valu("v_and_b32 v14, 7, v9", wr=[14], rd=[9])
    a.valu(f"v_lshl_add_u32 v{vDW}, v14, 4, v{vDW}", wr=[vDW], rd=[14, vDW])
    a.salu("s_lshl_b32 s50, s41, 12")
    a.valu(f"v_add_u32 v{vDW}, s50, v{vDW}", wr=[vDW], rd=[vDW])
    a.valu(f"v_lshlrev_b32 v{vL16}, 4, v9", wr=[vL16], rd=[9])
    a.valu("v_lshlrev_b32 v5, 11, v10", wr=[5], rd=[10])
    a.valu("v_lshl_add_u32 v5, v11, 3, v5", wr=[5], rd=[11, 5])
    a.salu(f"s_mul_i32 s50, s41, {4*BLK}")
    a.salu(f"s_add_u32 s{sM0b}, s43, s50")
    a.salu("s_mul_i32 s50, s6, 96")
    a.salu("s_mul_i32 s51, s4, 6")
    a.salu("s_add_u32 s50, s50, s51")
    a.salu("s_mul_i32 s51, s41, 3")
    a.salu("s_add_u32 s50, s50, s51")
    a.salu("s_lshl_b32 s50, s50, 7")
    a.salu("s_lshl_b32 s51, s42, 5")
    a.salu("s_add_u32 s50, s50, s51")
    a.salu(f"s_lshl_b32 s{sXo[0]}, s50, 10")
    a.salu(f"s_add_u32 s{sXo[1]}, s{sXo[0]}, {128*1024}")
    a.salu(f"s_add_u32 s{sXo[2]}, s{sXo[0]}, {2*128*1024}")
    a.salu(f"s_lshl_b32 s{sWo}, s42, 20")
    a.salu("s_lshl_b32 s51, s5, 7")
    a.salu(f"s_add_u32 s{sWo}, s{sWo}, s51")
    a.raw("s_waitcnt lgkmcnt(0)", 'wait')
    build_srd(a, SRD_X, 48, 49, 25165824)
    build_srd(a, SRD_W, 44, 45, 4194304)
    build_srd(a, SRD_OUT, 46, 47, 3145728)
    KSL = HALF
    def dma_tile(t):
        slot = (t & 3) * KSL
        for e in range(4):
            a.salu(f"s_add_u32 m0, s{sM0b}, {slot + e*BLK - e*1024}", wrs=['m0'])
            a.vmem(f"buffer_load_dwordx4 v{vDW}, s[{SRD_W}:{SRD_W+3}], s{sWo} offen offset:{e*1024} lds", ('T', t), rd=[vDW], m0=True)
        a.salu(f"s_add_u32 s{sWo}, s{sWo}, 65536")
    def x_loads(t):
        xb = XB + (t & 3) * 24
        for qt in range(3):
            for cc in range(2):
                d = xb + (qt * 2 + cc) * 4
                a.vmem(f"buffer_load_dwordx4 {vr(d,4)}, v{vL16}, s[{SRD_X}:{SRD_X+3}], s{sXo[qt]} offen offset:{cc*1024}", ('T', t), wr=R(d, 4), rd=[vL16])
            a.salu(f"s_add_u32 s{sXo[qt]}, s{sXo[qt]}, 2048")
    def read_frag(t, n):
        cc, nt = n >> 2, n & 3
        b = FB + (n & 3) * 4
        slot = (t & 3) * KSL
        for half in range(2):
            a.ds(f"ds_read_b64_tr_b16 {vr(b+2*half,2)}, v{vWa} offset:{slot + (cc*4 + half*2)*128 + nt*32}", ('F', t, n), wr=R(b+2*half, 2), rd=[vWa])
    NT = 16
    for t in range(4):
        dma_tile(t); x_loads(t)
    a.wait(vm=('T', 0))
    a.raw("s_barrier", 'barrier')
    for n in range(3): read_frag(0, n)
    for t in range(NT):
        last = t == NT - 1
        for g in range(8):
            if g == 0 and t >= 1 and t + 3 < NT: x_loads(t + 3)
            if g + 3 < 8: read_frag(t, g + 3)
            if g == 6 and not last:
                a.wait(vm=('T', t + 1), lg0=True)
                a.raw("s_barrier", 'barrier')
                if t + 4 < NT: dma_tile(t + 4)
                read_frag(t + 1, 0); read_frag(t + 1, 1)
            if g == 7 and not last: read_frag(t + 1, 2)
            a.wait(lg=('F', t, g))
            cc, nt = g >> 2, g & 3
            for qt in range(3):
                D = ACC + (qt * 4 + nt) * 4
                B = XB + (t & 3) * 24 + (qt * 2 + cc) * 4
                a.mfma(D, FB + (g & 3) * 4, B, None if (t == 0 and cc == 0) else D)
    a.raw("s_barrier", 'barrier')
    a.salu(f"s_mul_i32 s50, s{sW}, 12288")
    a.valu(f"v_add_u32 v4, s50, v{vL16}", wr=[4], rd=[vL16])
    for q in range(12):
        a.ds(f"ds_write_b128 v4, {vr(ACC+q*4,4)} offset:{q*1024}", ('W',), rd=[4] + R(ACC+q*4, 4))
    a.wait(lg0=True)
    a.raw("s_barrier", 'barrier')
    a.salu("s_mul_i32 s50, s41, 12288")
    a.salu("s_lshl_b32 s51, s42, 10")
    a.salu("s_add_u32 s50, s50, s51")
    a.valu(f"v_add_u32 v4, s50, v{vL16}", wr=[4], rd=[vL16])
    a.valu(f"v_add_u32 v6, {4*12288}, v4", wr=[6], rd=[4])
    RB = 72
    for qt in range(3):
        for kq in range(4):
            d = RB + (qt * 4 + kq) * 4
            vb = 4 if kq < 2 else 6
            a.ds(f"ds_read_b128 {vr(d,4)}, v{vb} offset:{(kq&1)*2*12288 + qt*4096}", ('R', qt), wr=R(d, 4), rd=[vb])
    a.salu("s_mul_i32 s50, s4, 96")
    a.salu("s_mul_i32 s51, s41, 48")
    a.salu("s_add_u32 s50, s50, s51")
    a.salu("s_lshl_b32 s50, s50, 11")
    a.salu("s_lshl_b32 s51, s6, 10")
    a.salu("s_add_u32 s50, s50, s51")
    a.salu("s_lshl_b32 s51, s5, 7")
    a.salu("s_add_u32 s50, s50, s51")
    a.salu("s_lshl_b32 s51, s42, 5")
    a.salu("s_add_u32 s50, s50, s51")
    for qt in range(3):
        a.wait(lg=('R', qt))
        d = RB + qt * 16
        for k in range(4):
            a.valu(f"v_add_f32 v{d+k}, v{d+k}, v{d+4+k}", wr=[d+k], rd=[d+k, d+4+k])
            a.valu(f"v_add_f32 v{d+8+k}, v{d+8+k}, v{d+12+k}", wr=[d+8+k], rd=[d+8+k, d+12+k])
        for k in range(4):
            a.valu(f"v_add_f32 v{d+k}, v{d+k}, v{d+8+k}", wr=[d+k], rd=[d+k, d+8+k])
        a.valu(f"v_cvt_pk_bf16_f32 v{d+4}, v{d}, v{d+1}", wr=[d+4], rd=[d, d+1])
        a.valu(f"v_cvt_pk_bf16_f32 v{d+5}, v{d+2}, v{d+3}", wr=[d+5], rd=[d+2, d+3])
        a.salu(f"s_add_u32 s51, s50, {qt*16*2048}")
        a.vmem(f"buffer_store_dwordx2 {vr(d+4,2)}, v5, s[{SRD_OUT}:{SRD_OUT+3}], s51 offen", ('S',), rd=R(d+4, 2) + [5])
    a.label("K2_done")
    a.raw("s_endpgm", 'end')
    return a

def kd(name, vgpr, sgpr):
    acc = (vgpr + 3) // 4 * 4
    return f""".amdhsa_kernel {name}
  .amdhsa_next_free_vgpr {vgpr}
  .amdhsa_next_free_sgpr {sgpr}
  .amdhsa_accum_offset {acc}
  .amdhsa_group_segment_fixed_size 0
  .amdhsa_kernarg_size 104
  .amdhsa_user_sgpr_count 2
  .amdhsa_user_sgpr_kernarg_segment_ptr 1
  .amdhsa_system_sgpr_workgroup_id_x 1
.end_amdhsa_kernel
"""

def main(outpath):
    ref = open("cdna_kernels/" + NAME + ".s.ref").read().splitlines()
    hdr = [l for l in ref if l.startswith(';') and '@launch' not in l and not l.startswith('; Override') and 'Harness parses' not in l and 'grid=ceil' not in l]
    hdr = [l for l in hdr]
    k1 = gen_k1(); k2 = gen_k2()
    t1 = k1.finalize(); t2 = k2.finalize()
    out = []
    out += hdr
    out.append(f"; @launch kernel={K1} grid=(512,1,1) block=(256,1,1) lds={4*SLOT}")
    out.append(f"; @launch kernel={K2} grid=(256,1,1) block=(512,1,1) lds={16*HALF}")
    out.append('.amdgcn_target "amdgcn-amd-amdhsa--gfx950"')
    out.append('.text')
    for nm, t in ((K1, t1), (K2, t2)):
        out.append(f".globl {nm}")
        out.append(".p2align 8")
        out.append(f".type {nm},@function")
        out += t
    out.append('.section .rodata,"a"')
    out.append('.p2align 6')
    out.append(kd(K1, 256, 64))
    out.append('.p2align 6')
    out.append(kd(K2, 168, 64))
    open(outpath, 'w').write("\n".join(out) + "\n")
    print("k1 instrs", k1.nins, "k2 instrs", k2.nins)

if __name__ == "__main__":
    main(sys.argv[1] if len(sys.argv) > 1 else "cdna_kernels/" + NAME + ".s")
```
